```python
import torch

def _softmax(x, axis=-1):
    return torch.softmax(x, dim=axis)
def _gelu(x):
    return torch.nn.functional.gelu(x, approximate="tanh")
def _silu(x):
    return torch.nn.functional.silu(x)
def _sigmoid(x):
    return torch.sigmoid(x)
def _layernorm(x, axis=-1, eps=1e-5):
    m = x.mean(dim=axis, keepdim=True)
    v = x.var(dim=axis, keepdim=True, unbiased=False)
    return (x - m) / torch.sqrt(v + eps)
def _scatter_add(tgt, idx, src, axis=0):
    return tgt.clone().index_add_(axis, idx, src)
def _segment_sum(src, seg, n):
    out = torch.zeros((n,) + src.shape[1:], dtype=src.dtype)
    return out.index_add_(0, seg, src)
def _pad(x, pw):
    flat = tuple(v for pair in reversed(pw) for v in pair)
    return torch.nn.functional.pad(x, flat)

kernel_name = 'recurrent_scan__sliding_block_cached__mixer_s_mlp__prompt'

def setup_inputs():

    _w = (lambda a: (lambda t: t.to(torch.bfloat16) if t.is_floating_point() else t)(torch.as_tensor(a)))
    def _A_setup():
        B, Sq, D = 1, 2048, 1024
        Hq, Hkv, Sk, Dh = 32, 4, 2048, 128
        assert Hq % Hkv == 0, (Hq, Hkv)
        return {
            "x": _w((lambda *s: torch.randn(*s, dtype=torch.bfloat16) * 0.05)(B, Sq, D)),
            "k_cache": _w((lambda *s: torch.randn(*s, dtype=torch.bfloat16) * 0.8)(B, Hkv, Sk, Dh)),
            "v_cache": _w((lambda *s: torch.randn(*s, dtype=torch.bfloat16) * 0.8)(B, Hkv, Sk, Dh)),
            "wq": _w((lambda *s: torch.randn(*s, dtype=torch.bfloat16) * 0.8)(D, Hq * Dh) * (D ** -0.5)),
            "wo": _w((lambda *s: torch.randn(*s, dtype=torch.bfloat16) * 0.8)(Hq * Dh, D) * ((Hq * Dh) ** -0.5)),
        }
    _A_in = _A_setup()

    def _B_setup():
        B, S, D, F = 1, 2048, 1024, 3584
        return {
            "x":  _w((lambda *s: torch.randn(*s, dtype=torch.bfloat16) * 0.05)(B, S, D)),
            "w1": _w((lambda *s: torch.randn(*s, dtype=torch.bfloat16) * 3.2)(D, D) * (D ** -0.5)),
            "w2": _w((lambda *s: torch.randn(*s, dtype=torch.bfloat16) * 3.2)(D, D) * (D ** -0.5)),
            "w3": _w((lambda *s: torch.randn(*s, dtype=torch.bfloat16) * 3.2)(D, F) * (D ** -0.5)),
            "w4": _w((lambda *s: torch.randn(*s, dtype=torch.bfloat16) * 1.6)(F, D) * (F ** -0.5)),
        }
    _B_in = _B_setup()

    return {
        "A_x": _A_in["x"],
        "A_k_cache": _A_in["k_cache"],
        "A_v_cache": _A_in["v_cache"],
        "A_wq": _A_in["wq"],
        "A_wo": _A_in["wo"],
        "B_x": _B_in["x"],
        "B_w1": _B_in["w1"],
        "B_w2": _B_in["w2"],
        "B_w3": _B_in["w3"],
        "B_w4": _B_in["w4"],
    }

def reference(A_x, A_k_cache, A_v_cache, A_wq, A_wo, B_x, B_w1, B_w2, B_w3, B_w4):
    def _A_ref(x, k_cache, v_cache, wq, wo):
        B, Sq, D = x.shape
        Hq, Dh = 32, 128
        Hkv, Sk = k_cache.shape[1], k_cache.shape[2]
        W = min(4096, max(256, Sk // 4))
        rep = Hq // Hkv
        q = (lambda x, *d: x.permute(*d))((x @ wq).reshape(B, Sq, Hq, Dh), 0, 2, 1, 3)
        k = (lambda x, n, axis: torch.repeat_interleave(x, n, dim=axis))(k_cache[:, :, Sk - W:, :], rep, axis=1)
        v = (lambda x, n, axis: torch.repeat_interleave(x, n, dim=axis))(v_cache[:, :, Sk - W:, :], rep, axis=1)
        scores = torch.einsum("bhqd,bhkd->bhqk", q, k) * (Dh ** -0.5)
        p = _softmax(scores, axis=-1)
        o = torch.einsum("bhqk,bhkd->bhqd", p, v)
        return (lambda x, *d: x.permute(*d))(o, 0, 2, 1, 3).reshape(B, Sq, Hq * Dh) @ wo

    def _B_ref(x, w1, w2, w3, w4):
        B, S, D = x.shape
        h = _gelu(_layernorm(x, axis=-1) @ w1)
        c = D // 4
        g0 = _pad(h[:, :, 0*c:1*c], ((0, 0), (1, 0), (0, 0)))[:, :S, :]
        g1 = _pad(h[:, :, 1*c:2*c], ((0, 0), (0, 1), (0, 0)))[:, 1:, :]
        g2 = _pad(h[:, :, 2*c:3*c], ((0, 0), (2, 0), (0, 0)))[:, :S, :]
        g3 = _pad(h[:, :, 3*c:   ], ((0, 0), (0, 2), (0, 0)))[:, 2:, :]
        hs = torch.concatenate([g0, g1, g2, g3], axis=-1) @ w2
        x1 = x + hs
        h2 = _gelu(_layernorm(x1, axis=-1) @ w3) @ w4
        return x1 + h2

    x = A_x
    xn = _layernorm(x, axis=-1)
    s = _A_ref(xn, A_k_cache, A_v_cache, A_wq, A_wo)
    g = _silu(_B_ref(xn, B_w1, B_w2, B_w3, B_w4))
    return x + s * g
```

```python
import sys, time, numpy as np
from hiprun import *

def gen(name, mf="16", ndma=0, ngl=0, nb128=0, ntr=0, nvalu=0, valu="fma", iters=60, region=1<<20, vm_inflight=16,
        order="A", tm=4, tn=4, zero=False, shareall=False, nopad=0):
    waves = 4
    L = []; A = L.append
    A(f".text\n.globl {name}\n.p2align 8\n.type {name},@function\n{name}:")
    A("s_load_dwordx2 s[4:5], s[0:1], 0\ns_load_dwordx2 s[6:7], s[0:1], 8\ns_waitcnt lgkmcnt(0)")
    A("s_mov_b32 s8, s4\ns_mov_b32 s9, s5\ns_mov_b32 s10, 0x10000000\ns_mov_b32 s11, 0x20000")
    A("s_mov_b32 s12, s6\ns_mov_b32 s13, s7\ns_mov_b32 s14, 0x100000\ns_mov_b32 s15, 0x20000")
    A("v_lshrrev_b32 v1, 6, v0\ns_nop 1\nv_readfirstlane_b32 s20, v1")
    A("v_and_b32 v2, 63, v0\nv_lshlrev_b32 v2, 4, v2")
    A("s_and_b32 s21, s2, 7")
    A(f"s_mul_i32 s21, s21, {0 if shareall else region}")
    A("s_lshr_b32 s22, s2, 3")
    A(f"s_mul_i32 s22, s22, {region//32}")
    A(f"s_mul_i32 s23, s20, 4096\ns_add_u32 s22, s22, s23")
    A("v_add_u32 v2, s21, v2")
    ldsper = 32768
    A(f"s_mul_i32 s24, s20, {ldsper}\ns_mov_b32 s25, 0")
    A(f"v_and_b32 v3, 63, v0\nv_lshlrev_b32 v3, 4, v3\nv_add_u32 v3, s24, v3")
    A(f"v_and_b32 v4, 63, v0\nv_lshlrev_b32 v4, 3, v4\nv_add_u32 v4, s24, v4")
    for i in range(256): A(f"v_accvgpr_write_b32 a{i}, 0")
    for j in range(8):
        A(f"s_add_u32 m0, s24, {j*4096}\ns_nop 0")
        for q in range(4): A(f"buffer_load_dwordx4 v2, s[8:11], s22 offen offset:{q*1024} lds")
        A(f"s_add_u32 s22, s22, 16384\ns_and_b32 s22, s22, {region-1}")
    for r in range(16, 144, 4):
        if zero:
            for q in range(4): A(f"v_mov_b32 v{r+q}, 0")
        else:
            A(f"buffer_load_dwordx4 v[{r}:{r+3}], v2, s[8:11], s22 offen offset:{((r-16)//4%4)*1024}")
            if (r//4) % 4 == 3: A(f"s_add_u32 s22, s22, 16384\ns_and_b32 s22, s22, {region-1}")
    for r in range(144, 176): A(f"v_mov_b32 v{r}, 1.0")
    A("s_waitcnt vmcnt(0)")
    A(f"s_mov_b32 s26, {iters}\ns_barrier\ns_memtime s[30:31]\ns_memrealtime s[34:35]\ns_waitcnt lgkmcnt(0)\n.p2align 6")
    A(f"{name}_loop:")
    mf_list = []
    if mf == "32":
        per = tm * tn; steps = 64 // per
        for s in range(steps):
            pairs = [(i, j) for i in range(tm) for j in range(tn)]
            if order == "S": pairs = [(i, j if i % 2 == 0 else tn-1-j) for i in range(tm) for j in range(tn)]
            if order == "D": pairs = [((i + j) % tm, j) for i in range(tm) for j in range(tn)]
            for (i, j) in pairs:
                a = (i * tn + j) * 16
                ra = 16 + ((s % 4) * 4 + i) * 4 % 64
                rb = 80 + ((s % 4) * 4 + j) * 4 % 64
                mf_list.append(f"v_mfma_f32_32x32x16_bf16 a[{a}:{a+15}], v[{ra}:{ra+3}], v[{rb}:{rb+3}], a[{a}:{a+15}]")
    else:
        M, N = 2*tm, 2*tn
        per = M * N; steps = 128 // per
        for s in range(steps):
            pairs = [(i, j) for i in range(M) for j in range(N)]
            if order == "S": pairs = [(i, j if i % 2 == 0 else N-1-j) for i in range(M) for j in range(N)]
            if order == "D": pairs = [((i + j) % M, j) for i in range(M) for j in range(N)]
            for (i, j) in pairs:
                a = (i * N + j) * 4
                ra = 16 + ((s % 2) * 8 + i) * 4 % 64
                rb = 80 + ((s % 2) * 8 + j) * 4 % 64
                mf_list.append(f"v_mfma_f32_16x16x32_bf16 a[{a}:{a+3}], v[{ra}:{ra+3}], v[{rb}:{rb+3}], a[{a}:{a+3}]")
    nm = len(mf_list)
    slots = [[] for _ in range(nm)]
    def spread(n, fn, phase=0.0):
        for i in range(n):
            slots[int((i + phase) * nm / n) % nm].append(fn(i))
    def dma(i):
        s = ""
        if i % 4 == 0: s += f"s_add_u32 m0, s24, s25\ns_add_u32 s25, s25, 4096\ns_and_b32 s25, s25, {ldsper-1}\n"
        s += f"buffer_load_dwordx4 v2, s[8:11], s22 offen offset:{(i%4)*1024} lds"
        if i % 4 == 3: s += f"\ns_add_u32 s22, s22, 16384\ns_and_b32 s22, s22, {region-1}"
        return s
    def gl(i):
        r = 80 + (i % 16) * 4
        s = f"buffer_load_dwordx4 v[{r}:{r+3}], v2, s[8:11], s28 offen offset:{(i%4)*1024}"
        if i % 4 == 3: s += f"\ns_add_u32 s28, s28, 16384\ns_and_b32 s28, s28, {region-1}"
        return s
    def b128(i):
        r = 80 + (i % 16) * 4
        return f"ds_read_b128 v[{r}:{r+3}], v3 offset:{(i%32)*1024}"
    def tr(i):
        r = 16 + (i % 32) * 2
        return f"ds_read_b64_tr_b16 v[{r}:{r+1}], v4 offset:{(i%64)*512}"
    def va(i):
        r = 144 + i % 16; r2 = 16 + (i * 5) % 128
        if valu == "fma": return f"v_fma_f32 v{r}, v{r2}, v{r2+0}, v{r}"
        if valu == "exp": return f"v_exp_f32 v{r}, v{r2}"
        if valu == "add": return f"v_add_f32 v{r}, v{r2}, v{r}"
        if valu == "nop": return "s_nop 0"
    if ndma: spread(ndma, dma, 0.5)
    if ngl: spread(ngl, gl, 0.25)
    if nb128: spread(nb128, b128)
    if ntr: spread(ntr, tr, 0.3)
    if nvalu: spread(nvalu, va, 0.7)
    nv = ndma + ngl
    for i in range(nm):
        if not (nopad and i % nopad == 0): A(mf_list[i])
        else: A("s_nop 7" if mf == "32" else "s_nop 3")
        for s in slots[i]: A(s)
        if i % (nm // 4) == nm // 4 - 1:
            w = "s_waitcnt"
            if nv: w += f" vmcnt({vm_inflight})"
            if nb128 or ntr: w += " lgkmcnt(4)"
            if w != "s_waitcnt": A(w)
    A("s_sub_u32 s26, s26, 1\ns_cmp_lg_u32 s26, 0")
    A(f"s_cbranch_scc1 {name}_loop")
    A("s_memtime s[32:33]\ns_memrealtime s[36:37]\ns_waitcnt vmcnt(0) lgkmcnt(0)")
    A("s_sub_u32 s32, s32, s30\ns_sub_u32 s36, s36, s34")
    A(f"s_mul_i32 s27, s2, 4\ns_add_u32 s27, s27, s20\ns_lshl_b32 s27, s27, 3")
    A("v_mov_b32 v5, s32\nv_mov_b32 v6, s36\nv_mov_b32 v7, s27")
    A("buffer_store_dword v5, v7, s[12:15], 0 offen\nbuffer_store_dword v6, v7, s[12:15], 0 offen offset:4")
    A("s_waitcnt vmcnt(0)\ns_endpgm")
    A(f""".section .rodata,"a"
.p2align 6
.amdhsa_kernel {name}
  .amdhsa_next_free_vgpr 512
  .amdhsa_next_free_sgpr 64
  .amdhsa_accum_offset 256
  .amdhsa_group_segment_fixed_size 0
  .amdhsa_kernarg_size 16
  .amdhsa_user_sgpr_count 2
  .amdhsa_user_sgpr_kernarg_segment_ptr 1
  .amdhsa_system_sgpr_workgroup_id_x 1
.end_amdhsa_kernel
""")
    return "\n".join(L).replace("s_mul_i32 s24, s20", "s_add_u32 s28, s22, 0x8000\ns_mul_i32 s24, s20", 1)

def run(cfgs, tag):
    asm = '.amdgcn_target "amdgcn-amd-amdhsa--gfx950"\n'
    for i, c in enumerate(cfgs):
        cc = {k: v for k, v in c.items() if k != "grid"}
        asm += gen(f"k{i}", **cc) + "\n"
    co = assemble(asm, tag + ".co", 2)
    if len(sys.argv) > 1 and sys.argv[1] == "asm": return
    m = Module(co)
    src = Buf(256 << 20)
    rnd = np.random.randn(32 << 20).astype(np.float32)
    h = (rnd.view(np.uint32) >> 16).astype(np.uint16)
    src.upload(np.tile(h, 4))
    out = Buf(1 << 20)
    for i, c in enumerate(cfgs):
        res = []
        g = c.get("grid", 256); it = c.get("iters", 60)
        for rep in range(5):
            out.fill(0); sync(); time.sleep(0.002)
            m.launch(f"k{i}", (g, 1, 1), (256, 1, 1), [src.ptr, out.ptr], lds=128 * 1024)
            sync()
            o = out.download(np.uint32, g * 4 * 2).reshape(-1, 2)
            cyc = np.median(o[:, 0]); rt = np.median(o[:, 1])
            res.append((cyc / it, rt / 100.0 / it, cyc / rt * 0.1, np.median(o[0::4, 0]) / it))
        r = np.median(np.array(res[1:]), axis=0)
        print(f"{str(c):100s} cyc/body {r[0]:7.1f} us/body {r[1]:6.3f} clk {r[2]:5.2f} wave0 {r[3]:7.1f}")

if __name__ == "__main__":
    cfgs = []
    for mf in ("16", "32"):
        a = lambda **k: cfgs.append(dict(mf=mf, **k))
        a(); a(order="S"); a(order="D"); a(zero=True)
        a(grid=128); a(grid=64)
        a(nopad=4); a(nopad=2)
        a(ndma=16); a(ndma=32); a(ngl=16); a(ngl=32)
        a(nb128=16); a(nb128=32); a(ntr=32); a(ntr=64)
        a(nvalu=64); a(nvalu=128); a(nvalu=64, valu="exp"); a(nvalu=128, valu="add"); a(nvalu=128, valu="nop")
        a(ndma=16, nb128=16, ntr=32)
        a(ndma=32, nb128=16, ntr=32)
        a(ndma=16, ngl=16, ntr=32)
        a(ndma=32, nb128=32, ntr=64, tm=2, tn=2)
        a(ndma=16, region=1<<24); a(ndma=8, region=1<<24); a(ndma=16, region=1<<24, shareall=True)
    run(cfgs, "mb3")
```

```python
import mb3, re
orig = mb3.gen
def gen(name, flag="", **k):
    s = orig(name, **k)
    s = re.sub(r"(buffer_load_dwordx4 v\[\d+:\d+\], v2, s\[8:11\], s28 offen offset:\d+)", r"\1 " + flag, s)
    return s
mb3.gen = gen
cfgs = []
for fl in ("", "sc1", "sc0 sc1", "nt", "sc0"):
    cfgs.append(dict(mf="16", ngl=32, flag=fl))
    cfgs.append(dict(mf="16", ngl=16, ndma=8, ntr=64, tm=2, tn=4, flag=fl))
mb3.run(cfgs, "mb6")
```

```python
import mb3, re
orig = mb3.gen
def gen(name, nst=0, flag="", width=4, **k):
    s = orig(name, **k)
    if not nst: return s
    lines = s.split("\n")
    i0 = next(i for i, l in enumerate(lines) if l.endswith("_loop:"))
    mf = [i for i in range(i0, len(lines)) if lines[i].startswith("v_mfma")]
    ins = {}
    for j in range(nst):
        p = mf[int((j + 0.6) * len(mf) / nst)]
        r = 176 + (j % 4) * 4
        op = {4: f"buffer_store_dwordx4 v[{r}:{r+3}]", 2: f"buffer_store_dwordx2 v[{r}:{r+1}]", 1: f"buffer_store_dword v{r}"}[width]
        ins[p] = f"{op}, v180, s[8:11], s29 offen offset:{(j % 4) * 1024} {flag}" + ("\ns_add_u32 s29, s29, 4096\ns_and_b32 s29, s29, 0x3ffff" if j % 4 == 3 else "")
    out = []
    for i, l in enumerate(lines):
        out.append(l)
        if i in ins: out.append(ins[i])
    s = "\n".join(out)
    sh = {4: 4, 2: 3, 1: 2}[width]
    s = s.replace("s_barrier\ns_memtime", f"s_mov_b32 s29, 0\ns_lshl_b32 s38, s2, 2\ns_add_u32 s38, s38, s20\ns_lshl_b32 s38, s38, 16\ns_add_u32 s38, s38, 0x8000000\nv_and_b32 v180, 63, v0\nv_lshlrev_b32 v180, {sh}, v180\nv_add_u32 v180, s38, v180\ns_barrier\ns_memtime", 1)
    s = s.replace("s_and_b32 s29, s29, 0x3ffff", "s_and_b32 s29, s29, 0xffff")
    return s
mb3.gen = gen
cfgs = []
a = lambda **k: cfgs.append(dict(mf="16", **k))
a(ngl=0, ndma=4)
for fl in ("", "sc1", "nt", "sc0 sc1"):
    a(nst=8, flag=fl, ndma=4); a(nst=16, flag=fl, ndma=4); a(nst=32, flag=fl, ndma=4)
a(ngl=16, ndma=16, ntr=64, tm=2, tn=4)
for fl in ("", "sc1", "nt"):
    a(nst=4, flag=fl, ngl=16, ndma=16, ntr=64, tm=2, tn=4); a(nst=8, flag=fl, ngl=16, ndma=16, ntr=64, tm=2, tn=4)
a(ngl=16, ndma=8, ntr=64, tm=2, tn=4)
for fl in ("", "sc1"):
    a(nst=2, flag=fl, ngl=16, ndma=8, ntr=64, tm=2, tn=4); a(nst=4, flag=fl, ngl=16, ndma=8, ntr=64, tm=2, tn=4); a(nst=8, flag=fl, ngl=16, ndma=8, ntr=64, tm=2, tn=4)
a(nst=16, flag="sc1", width=2, ndma=4); a(nst=16, flag="", width=2, ndma=4); a(nst=16, flag="", width=1, ndma=4)
if __name__ == "__main__": mb3.run(cfgs, "mb9")
```

```python
import mb3, mb9, re, sys
sys.argv = sys.argv[:2]
g9 = mb9.gen
def gen(name, wb=0, allw=False, **k):
    s = g9(name, **k)
    if not wb: return s
    code = f"s_and_b32 s39, s26, {wb-1}\n" + ("" if allw else "s_or_b32 s39, s39, s20\n") + f"s_cmp_eq_u32 s39, 0\ns_cbranch_scc0 {name}_nowb\nbuffer_wbl2 sc1\n{name}_nowb:\n"
    return s.replace(f"{name}_loop:\n", f"{name}_loop:\n" + code, 1)
mb3.gen = gen
cfgs = []
a = lambda **k: cfgs.append(dict(mf="16", **k))
base = dict(ngl=16, ndma=8, ntr=64, tm=2, tn=4, vm_inflight=36, barrier=1)
base.pop('barrier')
a(**base); a(nst=2, **base); a(nst=2, flag="sc1", **base)
for wb in (16, 8, 4):
    a(wb=wb, **base); a(nst=2, wb=wb, **base); a(nst=2, wb=wb, allw=True, **base)
base = dict(ngl=16, ndma=16, ntr=64, tm=2, tn=4, vm_inflight=48)
a(**base); a(nst=2, **base); a(nst=2, flag="sc1", **base)
for wb in (16, 8):
    a(wb=wb, **base); a(nst=2, wb=wb, **base)
mb3.run(cfgs, "mb10")
```
